```python
import torch

def _softmax(x, axis=-1):
    return torch.softmax(x, dim=axis)
def _gelu(x):
    return torch.nn.functional.gelu(x, approximate="tanh")
def _silu(x):
    return torch.nn.functional.silu(x)
def _sigmoid(x):
    return torch.sigmoid(x)
def _layernorm(x, axis=-1, eps=1e-5):
    m = x.mean(dim=axis, keepdim=True)
    v = x.var(dim=axis, keepdim=True, unbiased=False)
    return (x - m) / torch.sqrt(v + eps)
def _scatter_add(tgt, idx, src, axis=0):
    return tgt.clone().index_add_(axis, idx, src)
def _segment_sum(src, seg, n):
    out = torch.zeros((n,) + src.shape[1:], dtype=src.dtype)
    return out.index_add_(0, seg, src)
def _pad(x, pw):
    flat = tuple(v for pair in reversed(pw) for v in pair)
    return torch.nn.functional.pad(x, flat)

kernel_name = 'gated_mix__spectral_fnet__dense_activation_relu__prompt'

def setup_inputs():

    _w = (lambda a: (lambda t: t.to(torch.bfloat16) if t.is_floating_point() else t)(torch.as_tensor(a)))
    def _A_setup():
        B, S, D = 1, 2048, 1024
        ns = torch.arange(S)[:, None] * torch.arange(S)[None, :]
        nd = torch.arange(D)[:, None] * torch.arange(D)[None, :]
        Ws_re = torch.cos(-2.0 * torch.pi * ns / S).to(float)
        Ws_im = torch.sin(-2.0 * torch.pi * ns / S).to(float)
        Wd_re = torch.cos(-2.0 * torch.pi * nd / D).to(float)
        Wd_im = torch.sin(-2.0 * torch.pi * nd / D).to(float)
        return {
            "x": _w((lambda *s: torch.randn(*s, dtype=torch.bfloat16) * 0.05)(B, S, D)),
            "dft_seq_re": _w(Ws_re),
            "dft_seq_im": _w(Ws_im),
            "dft_hid_re": _w(Wd_re),
            "dft_hid_im": _w(Wd_im),
        }
    _A_in = _A_setup()

    def _B_setup():
        B, S, D, Dff = 1, 2048, 1024, 3584
        return {
            "x": _w((lambda *s: torch.randn(*s, dtype=torch.bfloat16) * 0.05)(B, S, D)),
            "w1": _w((lambda *s: torch.randn(*s, dtype=torch.bfloat16) * 0.4)(D, Dff)),
            "w2": _w((lambda *s: torch.randn(*s, dtype=torch.bfloat16) * 0.4)(Dff, D)),
        }
    _B_in = _B_setup()

    return {
        "A_x": _A_in["x"],
        "A_dft_seq_re": _A_in["dft_seq_re"],
        "A_dft_seq_im": _A_in["dft_seq_im"],
        "A_dft_hid_re": _A_in["dft_hid_re"],
        "A_dft_hid_im": _A_in["dft_hid_im"],
        "B_x": _B_in["x"],
        "B_w1": _B_in["w1"],
        "B_w2": _B_in["w2"],
        "gate_w": _w((lambda *s: torch.randn(*s, dtype=torch.bfloat16) * 0.05)(1024) * 16.0),
    }

def reference(A_x, A_dft_seq_re, A_dft_seq_im, A_dft_hid_re, A_dft_hid_im, B_x, B_w1, B_w2, gate_w):
    def _A_ref(x, dft_seq_re, dft_seq_im, dft_hid_re, dft_hid_im):
        a = torch.einsum("bsd,ed->bse", x, dft_hid_re)
        b = torch.einsum("bsd,ed->bse", x, dft_hid_im)
        y = torch.einsum("ts,bse->bte", dft_seq_re, a) - torch.einsum("ts,bse->bte", dft_seq_im, b)
        return y

    def _B_ref(x, w1, w2):
        h = torch.einsum("bsd,df->bsf", x, w1)
        zero = torch.zeros_like(h)
        h = torch.maximum(h, zero)
        return torch.einsum("bsf,fd->bsd", h, w2)

    x = A_x
    g = _sigmoid((x * gate_w).sum(-1, keepdims=True))
    a = _A_ref(x, A_dft_seq_re, A_dft_seq_im, A_dft_hid_re, A_dft_hid_im)
    b = _B_ref(x, B_w1, B_w2)
    return g * a + (1 - g) * b
```

```python
from gen_kernel import *

NS2 = 4
A2, B2 = 16384, 16384
STAGE2 = A2 + B2
K2_LDS = NS2*STAGE2
NY, NM = 2, 28

def gen_k2(a, cfg):
    NS = NS2; STAGE = STAGE2; NT = NY + NM
    sH, sW2, sU, sD, sG, sXC, sO = 36, 40, 44, 48, 52, 56, 60
    sXCD, sIDX, sMT, sNT, sKH, sW, sWM, sWN = 20, 21, 22, 23, 24, 25, 26, 27
    a(f'.globl {K2}', '.p2align 8', f'.type {K2},@function', f'{K2}:')
    a('s_cmp_ge_u32 s2, 256', 's_cbranch_scc1 K2_end')
    stamp(a, cfg, 0)
    a('s_load_dwordx2 s[4:5], s[0:1], 88', 's_load_dwordx2 s[6:7], s[0:1], 56', 's_load_dwordx4 s[8:11], s[0:1], 24', 's_load_dwordx2 s[12:13], s[0:1], 72')
    a('s_getpc_b64 s[14:15]', 'K2_pc:')
    a(f's_and_b32 s{sXCD}, s2, 7', f's_lshr_b32 s{sIDX}, s2, 3', f's_and_b32 s{sKH}, s{sXCD}, 1')
    a(f's_lshr_b32 s30, s{sXCD}, 1', 's_and_b32 s30, s30, 1', 's_lshl_b32 s30, s30, 3', f's_and_b32 s31, s{sIDX}, 7', f's_add_u32 s{sMT}, s30, s31')
    a(f's_lshr_b32 s30, s{sXCD}, 2', 's_lshl_b32 s30, s30, 2', f's_lshr_b32 s31, s{sIDX}, 3', f's_add_u32 s{sNT}, s30, s31')
    a('v_and_b32 v1, 63, v0', 'v_lshrrev_b32 v2, 6, v0', 'v_and_b32 v3, 15, v1', 'v_lshrrev_b32 v4, 4, v1')
    a(f'v_readfirstlane_b32 s{sW}, v2')
    a(f's_cmp_ge_u32 s{sW}, 4', 's_cbranch_scc1 K2_loader')
    ACB, ACY = 128, 192 - 16
    ACY = 64
    P = dict(X=16, W=32); Q = dict(X=48, W=192)
    bX0, bX1, bW = 208, 209, 210
    cX0, cX1, cW = 214, 215, 216
    vG = 220
    a(f's_lshr_b32 s{sWM}, s{sW}, 1', f's_and_b32 s{sWN}, s{sW}, 1')
    a('v_lshlrev_b32 v5, 4, v0', f's_sub_u32 s14, s14, K2_pc-{K2}', 's_subb_u32 s15, s15, 0', f's_mov_b32 s31, K_code_end-{K2}-16')
    if not cfg.get('no_prefetch'):
        for k in range(cfg.get('code2_kb', 12)//4):
            a(f'v_add_u32 v6, {k*4096}, v5', 'v_min_u32 v6, s31, v6', f'global_load_dwordx4 v[240:243], v6, s[14:15]')
    a('v_lshrrev_b32 v5, 1, v3', 'v_xor_b32 v5, v5, v4', 'v_lshlrev_b32 v5, 4, v5', 'v_lshlrev_b32 v6, 7, v3', 'v_add_u32 v5, v5, v6')
    a(f's_lshl_b32 s34, s{sWM}, 13', f'v_add_u32 v{bX0}, s34, v5', f'v_xor_b32 v{bX1}, 64, v{bX0}')
    a('v_lshlrev_b32 v5, 3, v4', 'v_lshrrev_b32 v6, 2, v3', 'v_add_u32 v5, v5, v6', 'v_lshlrev_b32 v5, 8, v5', 'v_and_b32 v7, 1, v4', 'v_lshlrev_b32 v7, 2, v7', 'v_or_b32 v7, v7, v6',
      f's_lshl_b32 s30, s{sWN}, 2', 'v_xor_b32 v7, s30, v7', 'v_lshlrev_b32 v7, 5, v7', 'v_add_u32 v5, v5, v7', 'v_and_b32 v6, 3, v3', 'v_lshlrev_b32 v6, 3, v6', 'v_add_u32 v5, v5, v6',
      f'v_add_u32 v{bW}, {A2}, v5')
    for j in range(1, 4): a(f'v_xor_b32 v{bW+j}, {32*j}, v{bW}')
    a(f'v_mov_b32 v{cX0}, v{bX0}', f'v_mov_b32 v{cX1}, v{bX1}')
    for j in range(4): a(f'v_mov_b32 v{cW+j}, v{bW+j}')
    a('s_waitcnt lgkmcnt(0)')
    srd(a, sG, 4, 5, G_BYTES, G_OFF); srd(a, sXC, 4, 5, X_BYTES, X_OFF); srd(a, sO, 12, 13, 2048*2048)
    a(f's_lshl_b32 s30, s{sMT}, 9', f's_lshl_b32 s31, s{sWM}, 8', 's_add_u32 s30, s30, s31', 'v_lshlrev_b32 v5, 2, v3')
    for i in range(4): a(f'buffer_load_dword v{vG+i}, v5, s[{sG}:{sG+3}], s30 offen offset:{64*i}')
    for r in range(64): a(f'v_mov_b32 v{ACB+r}, 0')
    for r in range(64): a(f'v_mov_b32 v{ACY+r}, 0')
    def reads(S, ks):
        L = []
        xb = cX0 if ks == 0 else cX1
        for (t, i) in [('X',0),('W',0),('X',1),('W',1),('X',2),('W',2),('X',3),('W',3)]:
            if t == 'X':
                L.append(f'ds_read_b128 {R(S["X"]+4*i)}, v{xb} offset:{i*2048}')
            else:
                r = S['W'] + 4*i
                L.append(f'ds_read_b64_tr_b16 {R(r,2)}, v{cW+i} offset:{ks*8192}'); L.append(f'ds_read_b64_tr_b16 {R(r+2,2)}, v{cW+i} offset:{ks*8192+1024}')
        return L
    def mfmas(S, acc):
        return [mfma(acc + 4*(j*4+i), S['W']+4*j, S['X']+4*i, acc + 4*(j*4+i)) for j in range(4) for i in range(4)]
    sRS, sCI = 64, 65
    def iteration(acc, tail):
        adv = [f's_add_u32 s{sRS}, s{sRS}, {STAGE}', f's_cmp_eq_u32 s{sRS}, {STAGE*NS}', f's_cselect_b32 s{sRS}, 0, s{sRS}', f'v_add_u32 v{cX0}, s{sRS}, v{bX0}']
        a(*interleave(mfmas(P, acc), reads(Q, 1) + adv))
        a('s_waitcnt lgkmcnt(0)', 's_barrier')
        M = mfmas(Q, acc)
        a(M[0])
        for j in range(4): a(f'v_add_u32 v{cW+j}, s{sRS}, v{bW+j}')
        a(*interleave(M[1:], reads(P, 0) + [f'v_add_u32 v{cX1}, s{sRS}, v{bX1}'] + tail))
        a('s_waitcnt lgkmcnt(0)')
    a(f's_mov_b32 s{sRS}, 0', f's_mov_b32 s{sCI}, 0')
    a('s_barrier')
    stamp(a, cfg, 1)
    a(*reads(P, 0)); a('s_waitcnt lgkmcnt(0)')
    for _ in range(NY): iteration(ACY, [])
    a('.p2align 6', 'K2_loop:')
    iteration(ACB, [f's_add_u32 s{sCI}, s{sCI}, 1', f's_cmp_lt_u32 s{sCI}, {NM}'])
    a('s_cbranch_scc1 K2_loop')
    stamp(a, cfg, 2)
    a('s_waitcnt vmcnt(0)', 's_nop 3')
    for i in range(4): a(f'v_sub_f32 v{8+i}, 1.0, v{vG+i}')
    for j in range(4):
        for i in range(4):
            for r in range(4):
                y = ACY + 4*(j*4+i) + r; b = ACB + 4*(j*4+i) + r
                a(f'v_mul_f32 v{b}, v{b}, v{8+i}', f'v_fmac_f32 v{b}, v{y}, v{vG+i}')
    a(f's_lshl_b32 s30, s{sMT}, 3', f's_add_u32 s30, s30, s{sNT}', 's_lshl_b32 s30, s30, 1', f's_xor_b32 s31, s{sKH}, 1',
      's_add_u32 s32, s30, s31', 's_lshl_b32 s32, s32, 2', f's_add_u32 s32, s32, s{sW}', 's_lshl_b32 s32, s32, 13',
      f's_add_u32 s33, s30, s{sKH}', 's_lshl_b32 s33, s33, 2', f's_add_u32 s33, s33, s{sW}', 's_lshl_b32 s33, s33, 13')
    a('v_lshlrev_b32 v5, 4, v1')
    SND, KEEP, RCV = 16, 64, 96
    a(f's_cmp_eq_u32 s{sKH}, 0', 's_cbranch_scc1 K2_kh0')
    def sel(keep0):
        for j in range(4):
            for ii in range(2):
                ks_ = ACB + 4*(j*4 + keep0 + ii); ss_ = ACB + 4*(j*4 + (2-keep0) + ii); blk = j*2 + ii
                for r in range(4):
                    a(f'v_mov_b32 v{SND+4*blk+r}, v{ss_+r}')
                for r in range(4):
                    a(f'v_mov_b32 v{KEEP+4*blk+r}, v{ks_+r}')
    sel(2)
    a(f'v_mov_b32 v12, v{vG+2}', f'v_mov_b32 v13, v{vG+3}')
    a('s_branch K2_send', 'K2_kh0:')
    sel(0)
    a('K2_send:')
    for blk in range(8):
        a(f'buffer_store_dwordx4 {R(SND+4*blk)}, v5, s[{sXC}:{sXC+3}], s32 offen offset:{(blk%4)*1024} sc1')
        if blk == 3: a('s_add_u32 s32, s32, 4096')
    stamp(a, cfg, 3)
    a(f's_lshl_b32 s30, s{sWM}, 6', f's_lshl_b32 s31, s{sKH}, 5', 's_add_u32 s30, s30, s31', 'v_add_u32 v6, s30, v3', 'v_lshlrev_b32 v6, 4, v6', f'v_add_u32 v6, s{sMT}, v6', 'v_lshlrev_b32 v6, 11, v6',
      f's_lshl_b32 s30, s{sNT}, 8', f's_lshl_b32 s31, s{sWN}, 7', 's_add_u32 s30, s30, s31', 'v_add_u32 v6, s30, v6',
      'v_and_b32 v7, 1, v4', 'v_lshlrev_b32 v7, 5, v7', 'v_add_u32 v6, v6, v7', 'v_lshrrev_b32 v7, 1, v4', 'v_lshlrev_b32 v7, 4, v7', 'v_add_u32 v6, v6, v7')
    a('s_mov_b32 s34, 0', 's_add_u32 s35, s33, 4096')
    a('K2_poll:')
    for blk in range(8):
        a(f'buffer_load_dwordx4 {R(RCV+4*blk)}, v5, s[{sXC}:{sXC+3}], s{33 if blk < 4 else 35} offen offset:{(blk%4)*1024} sc1')
    a('s_waitcnt vmcnt(0)')
    a(f'v_max3_u32 v7, v{RCV}, v{RCV+1}, v{RCV+2}')
    for k in range(3, 31, 2): a(f'v_max3_u32 v7, v7, v{RCV+k}, v{RCV+k+1}')
    a(f'v_max_u32 v7, v7, v{RCV+31}', 'v_cmp_eq_u32 vcc, -1, v7', 's_add_u32 s34, s34, 1', 's_cmp_lt_u32 s34, 0x40000', 's_cselect_b64 s[30:31], -1, 0',
      's_and_b64 vcc, vcc, s[30:31]', 's_cbranch_vccnz K2_poll')
    stamp(a, cfg, 4)
    for k in range(32): a(f'v_add_f32 v{KEEP+k}, v{KEEP+k}, v{RCV+k}')
    PK = 16
    for ii in range(2):
        for pr in range(2):
            r = PK + 8*ii + 4*pr
            d0 = KEEP + 4*((2*pr)*2 + ii); d1 = KEEP + 4*((2*pr+1)*2 + ii)
            a(f'v_cvt_pk_bf16_f32 v{r}, v{d0}, v{d0+1}', f'v_cvt_pk_bf16_f32 v{r+1}, v{d0+2}, v{d0+3}',
              f'v_cvt_pk_bf16_f32 v{r+2}, v{d1}, v{d1+1}', f'v_cvt_pk_bf16_f32 v{r+3}, v{d1+2}, v{d1+3}')
    a('s_nop 1')
    for ii in range(2):
        for pr in range(2):
            r = PK + 8*ii + 4*pr
            a(f'v_permlane16_swap_b32 v{r}, v{r+2}', f'v_permlane16_swap_b32 v{r+1}, v{r+3}')
    a('s_nop 1', f's_mov_b32 s30, {16*16*2048}')
    for ii in range(2):
        for pr in range(2):
            r = PK + 8*ii + 4*pr
            a(f'buffer_store_dwordx4 {R(r)}, v6, s[{sO}:{sO+3}], {"0" if ii == 0 else "s30"} offen offset:{64*pr}')
    if cfg.get('stamps'):
        a('s_waitcnt vmcnt(0)'); stamp(a, cfg, 5)
        a(f's_cmp_eq_u32 s{sW}, 0', 's_cbranch_scc0 K2_end'); stamp_flush(a, cfg, 6, 1, 16)
    a('s_endpgm')
    a('K2_loader:')
    VA, VB, VDA, VUB = 16, 20, 24, 28
    a(f's_sub_u32 s30, s{sW}, 4')
    a('s_lshl_b32 s31, s30, 5', 'v_lshrrev_b32 v5, 3, v1', 'v_add_u32 v5, s31, v5', 'v_and_b32 v6, 7, v1', 'v_xor_b32 v6, v6, v4')
    a(f's_lshl_b32 s31, s{sMT}, 7', 'v_add_u32 v7, s31, v5', 's_mov_b32 s32, 7168', 'v_mul_lo_u32 v7, v7, s32', f's_mul_i32 s33, s{sKH}, 3584', 'v_add_u32 v7, s33, v7')
    a('v_lshlrev_b32 v8, 14, v5')
    for j in range(4):
        a(f'v_xor_b32 v9, {4*(j&1)}, v6', 'v_lshlrev_b32 v9, 4, v9')
        a('v_add_u32 v10, v9, v8', f'v_add_u32 v{VDA+j}, {j*8*16384 - j*1024}, v10')
        a('v_add_u32 v10, v9, v7', f'v_add_u32 v{VA+j}, {j*8*7168 - j*1024}, v10')
    a('s_lshl_b32 s31, s30, 4', 'v_add_u32 v5, s31, v4', 'v_lshlrev_b32 v5, 11, v5')
    a(f's_lshl_b32 s31, s{sNT}, 8', f's_mul_i32 s32, s{sKH}, {1792*2048}', 's_add_u32 s31, s31, s32')
    a(f's_lshl_b32 s33, s{sMT}, 19', f's_lshl_b32 s34, s{sKH}, 18', 's_add_u32 s33, s33, s34', f's_lshl_b32 s34, s{sNT}, 7', 's_add_u32 s33, s33, s34')
    for j in range(4):
        a(f'v_or_b32 v6, {(j>>1)<<2}, v4', 'v_lshlrev_b32 v6, 1, v6', 'v_xor_b32 v6, v6, v3')
        a('v_lshlrev_b32 v7, 4, v6', 'v_add_u32 v7, v7, v5', 'v_add_u32 v7, s31, v7', f'v_add_u32 v{VB+j}, {j*4*2048 - j*1024}, v7')
        a('v_lshrrev_b32 v7, 1, v6', 'v_and_b32 v7, 1, v7', 'v_lshlrev_b32 v7, 10, v7', 'v_lshrrev_b32 v8, 2, v6', 'v_lshlrev_b32 v8, 5, v8', 'v_add_u32 v7, v7, v8',
          'v_and_b32 v8, 1, v6', 'v_lshlrev_b32 v8, 4, v8', 'v_add_u32 v7, v7, v8', 'v_add_u32 v7, v7, v5', 'v_add_u32 v7, s33, v7', f'v_add_u32 v{VUB+j}, {j*4*2048 - j*1024}, v7')
    a('s_waitcnt lgkmcnt(0)')
    srd(a, sH, 4, 5, H_BYTES, H_OFF); srd(a, sW2, 6, 7, 3584*2048); srd(a, sU, 4, 5, U_BYTES, U_OFF)
    a(f's_cmp_eq_u32 s{sKH}, 0', f's_cselect_b32 s{sD}, s8, s10', f's_cselect_b32 s{sD+1}, s9, s11', f's_mov_b32 s{sD+2}, {1024*2048}', f's_mov_b32 s{sD+3}, 0x20000')
    sLA, sLB, sKA, sKB, sST, sIT = 66, 67, 68, 69, 70, 71
    a(f's_lshl_b32 s{sLA}, s30, 12', f's_add_u32 s{sLB}, s{sLA}, {A2}', f's_mov_b32 s{sST}, 0')
    def dma(va, sa, ka, vb, sb, kb):
        a(f's_add_u32 m0, s{sST}, s{sLA}', 's_nop 0')
        for j in range(4): a(f'buffer_load_dwordx4 v{va+j}, s[{sa}:{sa+3}], {ka} offen offset:{j*1024} lds')
        a(f's_add_u32 m0, s{sST}, s{sLB}', 's_nop 0')
        for j in range(4): a(f'buffer_load_dwordx4 v{vb+j}, s[{sb}:{sb+3}], {kb} offen offset:{j*1024} lds')
        a(f's_add_u32 s{sST}, s{sST}, {STAGE}', f's_cmp_eq_u32 s{sST}, {STAGE*NS}', f's_cselect_b32 s{sST}, 0, s{sST}')
    def dma_main():
        dma(VA, sH, f's{sKA}', VB, sW2, f's{sKB}')
        a(f's_add_u32 s{sKA}, s{sKA}, 128', f's_add_u32 s{sKB}, s{sKB}, {64*2048}')
    a(f's_mov_b32 s{sKA}, 0', f's_mov_b32 s{sKB}, 0')
    dma(VDA, sD, f's{sKA}', VUB, sU, f's{sKB}')
    a(f's_mov_b32 s{sKA}, 128', f's_mov_b32 s{sKB}, {64*2048}')
    dma(VDA, sD, f's{sKA}', VUB, sU, f's{sKB}')
    a(f's_mov_b32 s{sKA}, 0', f's_mov_b32 s{sKB}, 0')
    for _ in range(NS - NY): dma_main()
    a(f's_waitcnt vmcnt({8*(NS-1)})', 's_barrier')
    a(f's_mov_b32 s{sIT}, 0')
    a('K2_lloop:')
    a(f's_waitcnt vmcnt({8*(NS-2)})', 's_barrier')
    a(f's_add_u32 s{sIT}, s{sIT}, 1', f's_cmp_ge_u32 s{sIT}, {NT-NS+1}', 's_cbranch_scc1 K2_lskip')
    dma_main()
    a('s_branch K2_lnext', 'K2_lskip:', 's_waitcnt vmcnt(0)', 'K2_lnext:')
    a(f's_cmp_lt_u32 s{sIT}, {NT}', 's_cbranch_scc1 K2_lloop')
    a('K2_end:', 's_endpgm')
```

```python
import sys, math

K1 = 'gated_mix__spectral_fnet__dense_activation_relu__prompt_kernel'
K2 = 'fnet_stage2_kernel'

H_OFF, H_BYTES = 0, 2048*7168
U_OFF, U_BYTES = 0x1000000, 16*256*2048
G_OFF, G_BYTES = 0x1800000, 8192
X_OFF, X_BYTES = 0x2000000, 128*2*4*8192

class Asm:
    def __init__(self): self.lines = []
    def __call__(self, *ss):
        for s in ss:
            for l in s.split('\n'): self.lines.append(l)
    def text(self): return '\n'.join(self.lines) + '\n'

def srd(a, q, lo, hi, nbytes, off=0):
    if off:
        a(f's_add_u32 s{q}, s{lo}, {hex(off)}', f's_addc_u32 s{q+1}, s{hi}, 0')
    else:
        a(f's_mov_b32 s{q}, s{lo}', f's_mov_b32 s{q+1}, s{hi}')
    a(f's_mov_b32 s{q+2}, {hex(nbytes)}', f's_mov_b32 s{q+3}, 0x20000')

def interleave(M, others, start=0, per=1):
    out = []; k = 0
    for n, m in enumerate(M):
        out.append(m)
        if n >= start:
            for _ in range(per):
                if k < len(others): out.append(others[k]); k += 1
    return out + others[k:]

def R(b, n=4): return f'v[{b}:{b+n-1}]'
def mfma(d, x, y, c): return f'v_mfma_f32_16x16x32_bf16 {R(d)}, {R(x)}, {R(y)}, {c if isinstance(c,str) else R(c)}'

def stamp(a, cfg, n):
    if cfg.get('stamps'):
        a(f's_memtime s[{76+4*n}:{77+4*n}]', f's_memrealtime s[{78+4*n}:{79+4*n}]')

def stamp_flush(a, cfg, nst, slot, vtmp):
    if not cfg.get('stamps'): return
    a('s_waitcnt lgkmcnt(0)')
    a('s_load_dwordx2 s[4:5], s[0:1], 88', 's_waitcnt lgkmcnt(0)')
    srd(a, 8, 4, 5, 0x100000, 0x4000000)
    for n in range(nst):
        a(f'v_mov_b32 v{vtmp+2*n}, s{76+4*n}', f'v_mov_b32 v{vtmp+2*n+1}, s{78+4*n}')
    a(f's_add_u32 s3, s2, {slot*256}', 's_lshl_b32 s3, s3, 8', f'v_mov_b32 v{vtmp+30}, s3')
    a('s_mov_b64 exec, 1')
    for n in range(nst):
        a(f'buffer_store_dwordx2 v[{vtmp+2*n}:{vtmp+2*n+1}], v{vtmp+30}, s[8:11], 0 offen offset:{8*n}')
    a('s_waitcnt vmcnt(0)')

def gen_k1(a, cfg):
    NS = 3
    A_BYTES, B_BYTES = 16384, 28672
    STAGE = A_BYTES + B_BYTES
    FB = 2*STAGE
    sX, sW1, sH, sU, sXC, sG, sGW, sW2, sDR, sDI = 36, 40, 44, 48, 52, 56, 60, 64, 68, 72
    sXCD, sIDX, sMT, sNT, sW, sWM, sWN, sS1, sHH = 20, 21, 22, 23, 25, 26, 27, 28, 29
    PFD = 240
    a(f'.globl {K1}', '.p2align 8', f'.type {K1},@function', f'{K1}:')
    a('s_cmp_ge_u32 s2, 256', 's_cbranch_scc1 K1_end')
    stamp(a, cfg, 0)
    a('s_load_dwordx2 s[4:5], s[0:1], 0', 's_load_dwordx2 s[6:7], s[0:1], 48', 's_load_dwordx2 s[8:9], s[0:1], 88',
      's_load_dwordx2 s[10:11], s[0:1], 56', 's_load_dwordx2 s[12:13], s[0:1], 64', 's_load_dwordx4 s[16:19], s[0:1], 24')
    a('s_getpc_b64 s[14:15]', 'K1_pc:')
    a(f's_and_b32 s{sXCD}, s2, 7', f's_lshr_b32 s{sIDX}, s2, 3')
    a(f's_and_b32 s30, s{sXCD}, 1', 's_lshl_b32 s30, s30, 3', f's_and_b32 s31, s{sIDX}, 7', f's_add_u32 s{sMT}, s30, s31')
    a(f's_lshr_b32 s31, s{sXCD}, 1', 's_lshl_b32 s32, s31, 2', f's_lshr_b32 s33, s{sIDX}, 3', f's_add_u32 s{sNT}, s32, s33')
    a(f's_and_b32 s{sHH}, s{sIDX}, 1', f's_lshr_b32 s32, s{sIDX}, 1', 's_lshl_b32 s31, s31, 1', 's_lshr_b32 s33, s32, 3',
      's_add_u32 s31, s31, s33', 's_lshl_b32 s31, s31, 4', 's_and_b32 s32, s32, 7', 's_add_u32 s31, s31, s32', f's_add_u32 s{sS1}, s31, s30')
    a('v_and_b32 v1, 63, v0', 'v_lshrrev_b32 v2, 6, v0', 'v_and_b32 v3, 15, v1', 'v_lshrrev_b32 v4, 4, v1')
    a(f'v_readfirstlane_b32 s{sW}, v2')
    a('v_lshrrev_b32 v5, 1, v1', 'v_lshlrev_b32 v5, 6, v5', 'v_xor_b32 v6, v1, v4', 'v_and_b32 v6, 1, v6', 'v_lshlrev_b32 v6, 5, v6', 'v_add_u32 v5, v5, v6')
    a('s_waitcnt lgkmcnt(0)')
    srd(a, sX, 4, 5, 2048*2048); srd(a, sW1, 6, 7, 1024*7168); srd(a, sGW, 12, 13, 2048)
    srd(a, sU, 8, 9, U_BYTES, U_OFF); srd(a, sG, 8, 9, G_BYTES, G_OFF)
    GWR = 232
    a(f'buffer_load_dwordx4 {R(GWR)}, v5, s[{sGW}:{sGW+3}], 0 offen', f'buffer_load_dwordx4 {R(GWR+4)}, v5, s[{sGW}:{sGW+3}], 0 offen offset:16')
    a(f's_cmp_ge_u32 s{sW}, 4', 's_cbranch_scc1 K1_loader_start')
    a('s_branch K1_consts')
    a('K1_loader_start:')
    VA, VB, VF = 200, 204, 211
    a(f's_sub_u32 s30, s{sW}, 4')
    a('v_lshrrev_b32 v5, 2, v1', 'v_lshlrev_b32 v5, 6, v5', 'v_lshrrev_b32 v6, 5, v1', 'v_lshlrev_b32 v6, 1, v6', 'v_and_b32 v7, 3, v1',
      'v_xor_b32 v6, v6, v7', 'v_lshlrev_b32 v6, 4, v6', f'v_add_u32 v{VF}, v5, v6')
    a('s_lshl_b32 s31, s30, 2', 's_lshl_b32 s32, s31, 7', f's_add_u32 s32, s32, s{sS1}', 's_lshl_b32 s32, s32, 11')
    a('s_lshl_b32 s33, s31, 11', f's_add_u32 s33, s33, {FB}')
    for r in range(4):
        for hf in range(2):
            a(f's_add_u32 m0, s33, {r*2048 + hf*1024}', f's_add_u32 s34, s32, {r*128*2048 + hf*1024}')
            a(f'buffer_load_dwordx4 v{VF}, s[{sX}:{sX+3}], s34 offen lds')
    a('s_lshl_b32 s31, s30, 5', 'v_lshrrev_b32 v5, 3, v1', 'v_add_u32 v5, s31, v5', 'v_lshlrev_b32 v5, 4, v5', f'v_add_u32 v5, s{sMT}, v5', 'v_lshlrev_b32 v5, 11, v5')
    a('v_and_b32 v6, 7, v1', 'v_xor_b32 v6, v6, v4')
    for j in range(4):
        a(f'v_xor_b32 v7, {4*(j&1)}, v6', 'v_lshlrev_b32 v7, 4, v7', 'v_add_u32 v7, v7, v5', f'v_add_u32 v{VA+j}, {j*8*16*2048 - j*1024}, v7')
    a(f's_mul_i32 s31, s{sNT}, 448', f's_mul_i32 s32, s30, {16*7168}', 's_add_u32 s31, s31, s32', 's_mov_b32 s32, 2341', 's_mov_b32 s33, 7168')
    for j in range(7):
        a(f'v_add_u32 v5, {64*j}, v1', 'v_mul_lo_u32 v6, v5, s32', 'v_lshrrev_b32 v6, 16, v6', 'v_mul_u32_u24 v7, 28, v6', 'v_sub_u32 v7, v5, v7')
        a('v_lshrrev_b32 v8, 3, v6', 'v_and_b32 v8, 1, v8', 'v_lshlrev_b32 v8, 1, v8', 'v_xor_b32 v7, v7, v8', 'v_lshlrev_b32 v7, 4, v7')
        a('v_mul_lo_u32 v6, v6, s33', 'v_add_u32 v6, v6, v7', 'v_add_u32 v6, s31, v6', f'v_subrev_u32 v{VB+j}, {(j&3)*1024}, v6')
    sLA, sLB, sKA, sKB, sST, sIT = 96, 97, 98, 99, 100, 101
    a(f's_lshl_b32 s{sLA}, s30, 12', f's_mul_i32 s{sLB}, s30, 7168', f's_add_u32 s{sLB}, s{sLB}, {A_BYTES}')
    a(f's_mov_b32 s{sKA}, 0', f's_mov_b32 s{sKB}, 0', f's_mov_b32 s{sST}, 0')
    def dma_block():
        a(f's_add_u32 m0, s{sST}, s{sLA}', 's_nop 0')
        for j in range(4): a(f'buffer_load_dwordx4 v{VA+j}, s[{sX}:{sX+3}], s{sKA} offen offset:{j*1024} lds')
        a(f's_add_u32 m0, s{sST}, s{sLB}', 's_nop 0')
        for j in range(4): a(f'buffer_load_dwordx4 v{VB+j}, s[{sW1}:{sW1+3}], s{sKB} offen offset:{j*1024} lds')
        a('s_add_u32 m0, m0, 4096', 's_nop 0')
        for j in range(4, 7): a(f'buffer_load_dwordx4 v{VB+j}, s[{sW1}:{sW1+3}], s{sKB} offen offset:{(j-4)*1024} lds')
        a(f's_add_u32 s{sKA}, s{sKA}, 128', f's_add_u32 s{sKB}, s{sKB}, {64*7168}', f's_add_u32 s{sST}, s{sST}, {STAGE}',
          f's_cmp_eq_u32 s{sST}, {STAGE*NS}', f's_cselect_b32 s{sST}, 0, s{sST}')
    dma_block(); dma_block()
    a('K1_consts:')
    CAr, CAi, TWc, TWs, CBC, CBS, CBN, CGr, CGn = 16, 20, 24, 32, 40, 48, 56, 64, 68
    T0 = 72
    a('v_cvt_f32_u32 v5, v3', 'v_cvt_f32_u32 v6, v4')
    a(f's_lshl_b32 s30, s{sHH}, 4', 'v_add_u32 v7, s30, v3', 'v_cvt_f32_u32 v7, v7')
    a('v_mul_f32 v8, 0x3d000000, v7', 'v_mul_f32 v9, 0x41000000, v6', 'v_mul_f32 v9, v9, v8')
    for jj in range(8):
        a(f'v_cos_f32 v{T0+jj}, v9', f'v_sin_f32 v{T0+8+jj}, -v9')
        if jj < 7: a('v_add_f32 v9, v9, v8')
    for p in range(4):
        a(f'v_cvt_pk_bf16_f32 v{CAr+p}, v{T0+2*p}, v{T0+2*p+1}', f'v_cvt_pk_bf16_f32 v{CAi+p}, v{T0+8+2*p}, v{T0+8+2*p+1}')
    a('v_mul_f32 v8, 0x3a800000, v7', 'v_mul_f32 v9, 4.0, v6', 'v_mul_f32 v9, v9, v8', 'v_mul_f32 v10, 0x41500000, v8')
    for k in range(8):
        a(f'v_cos_f32 v{TWc+k}, v9', f'v_sin_f32 v{TWs+k}, v9')
        if k == 3: a('v_add_f32 v9, v9, v10')
        elif k < 7: a('v_add_f32 v9, v9, v8')
    for sg in range(2):
        a(f'v_add_f32 v8, {"0" if sg == 0 else "0x41800000"}, v5', 'v_mul_f32 v8, 0x3d000000, v8', 'v_mul_f32 v9, 4.0, v6', 'v_mul_f32 v9, v9, v8', 'v_mul_f32 v10, 0x41500000, v8')
        for jj in range(8):
            a(f'v_cos_f32 v{T0+jj}, v9', f'v_sin_f32 v{T0+8+jj}, v9')
            if jj == 3: a('v_add_f32 v9, v9, v10')
            elif jj < 7: a('v_add_f32 v9, v9, v8')
        for p in range(4):
            a(f'v_cvt_pk_bf16_f32 v{CBC+4*sg+p}, v{T0+2*p}, v{T0+2*p+1}', f'v_cvt_pk_bf16_f32 v{CBS+4*sg+p}, v{T0+8+2*p}, v{T0+8+2*p+1}')
        for p in range(4):
            a(f'v_xor_b32 v{CBN+4*sg+p}, 0x80008000, v{CBS+4*sg+p}')
    a('v_and_b32 v8, 1, v4', 'v_lshlrev_b32 v8, 10, v8', f'v_add_u32 v8, s{sS1}, v8', 'v_mul_u32_u24 v8, v8, v3', 'v_cvt_f32_u32 v8, v8',
      'v_mul_f32 v9, 0x3a000000, v8', 'v_lshrrev_b32 v8, 1, v4', 'v_cvt_f32_u32 v8, v8')
    a('v_mul_f32 v8, 0x3e800000, v8', 'v_sub_f32 v9, v9, v8', 'v_mul_f32 v8, 0x3d800000, v5')
    for jj in range(8):
        a(f'v_cos_f32 v{T0+jj}, v9', f'v_sin_f32 v{T0+8+jj}, v9')
        if jj < 7: a('v_add_f32 v9, v9, v8')
    for p in range(4):
        a(f'v_cvt_pk_bf16_f32 v{CGr+p}, v{T0+2*p}, v{T0+2*p+1}', f'v_cvt_pk_bf16_f32 v{CGn+p}, v{T0+8+2*p}, v{T0+8+2*p+1}')
    vAT0, vAT1, vZW, vZR, vGA = 10, 11, 12, 14, 15
    a('v_lshlrev_b32 v5, 3, v4', 'v_lshrrev_b32 v6, 2, v3', 'v_add_u32 v5, v5, v6', 'v_lshlrev_b32 v5, 6, v5', 'v_and_b32 v6, 3, v3', 'v_lshlrev_b32 v6, 3, v6', 'v_add_u32 v5, v5, v6')
    a(f's_lshl_b32 s30, s{sW}, 12', f's_add_u32 s30, s30, {FB}', 'v_add_u32 v5, s30, v5')
    a('v_and_b32 v6, 1, v4', 'v_lshlrev_b32 v6, 5, v6', f'v_add_u32 v{vAT0}, v5, v6', f'v_xor_b32 v{vAT1}, 32, v{vAT0}')
    a(f's_lshl_b32 s31, s{sHH}, 11', 's_add_u32 s31, s31, s30', 'v_lshlrev_b32 v5, 5, v1', f'v_add_u32 v{vGA}, s31, v5')
    for rr in range(2):
        a(f's_lshl_b32 s31, s{sW}, 1', f's_add_u32 s31, s31, {rr}', 's_and_b32 s32, s31, 3', 's_lshr_b32 s33, s31, 3', 's_lshl_b32 s33, s33, 2', 's_or_b32 s32, s32, s33')
        a('v_xor_b32 v5, s32, v3', 'v_lshlrev_b32 v5, 5, v5', 'v_lshlrev_b32 v6, 3, v4', 'v_add_u32 v5, v5, v6', 's_lshl_b32 s31, s31, 11', f's_add_u32 s31, s31, {FB}', f'v_add_u32 v{vZW+rr}, s31, v5')
    a('v_and_b32 v5, 1, v4', 'v_lshlrev_b32 v6, 3, v5', 'v_lshrrev_b32 v7, 2, v3', 'v_add_u32 v6, v6, v7', 'v_lshlrev_b32 v6, 11, v6',
      'v_lshrrev_b32 v8, 1, v4', 'v_lshlrev_b32 v8, 10, v8', 'v_add_u32 v6, v6, v8', 'v_lshlrev_b32 v5, 2, v5', 'v_or_b32 v5, v5, v7',
      f's_lshl_b32 s31, s{sW}, 2', 'v_xor_b32 v5, s31, v5', 'v_lshlrev_b32 v5, 5, v5', 'v_add_u32 v6, v6, v5', 'v_and_b32 v5, 3, v3', 'v_lshlrev_b32 v5, 3, v5', 'v_add_u32 v6, v6, v5',
      f'v_add_u32 v{vZR}, {FB}, v6')
    a(f's_cmp_ge_u32 s{sW}, 4', 's_cbranch_scc1 K1_fft_wait_loader')
    srd(a, sW2, 10, 11, 3584*2048); srd(a, sDR, 16, 17, 1024*2048); srd(a, sDI, 18, 19, 1024*2048); srd(a, sXC, 8, 9, X_BYTES, X_OFF); srd(a, sH, 8, 9, H_BYTES, H_OFF)
    a('v_lshlrev_b32 v5, 4, v1', f's_lshl_b32 s30, s{sW}, 10', 'v_add_u32 v5, s30, v5')
    if not cfg.get('no_prefetch'):
        ncode = cfg.get('code_kb', 24)//4
        a(f's_sub_u32 s14, s14, K1_pc-{K1}', 's_subb_u32 s15, s15, 0')
        a(f's_mov_b32 s31, K_code_end-{K1}-16')
        for k in range(ncode):
            a(f'v_add_u32 v6, {k*4096}, v5', 'v_min_u32 v6, s31, v6', f'global_load_dwordx4 {R(PFD)}, v6, s[14:15]')
        a('s_mul_i32 s30, s2, 16384')
        for k in range(4): a(f'buffer_load_dwordx4 {R(PFD)}, v5, s[{sX}:{sX+3}], s30 offen' + (f' offset:0' if k == 0 else ''), 's_add_u32 s30, s30, 4096')
        a('s_mul_i32 s30, s2, 28672')
        for k in range(7): a(f'buffer_load_dwordx4 {R(PFD)}, v5, s[{sW1}:{sW1+3}], s30 offen', 's_add_u32 s30, s30, 4096')
        a('s_mul_i32 s30, s2, 28672')
        for k in range(7): a(f'buffer_load_dwordx4 {R(PFD)}, v5, s[{sW2}:{sW2+3}], s30 offen', 's_add_u32 s30, s30, 4096')
        a('s_and_b32 s30, s2, 127', 's_lshl_b32 s30, s30, 14', 'v_lshlrev_b32 v6, 2, v1')
        a(f'buffer_load_dword v{PFD}, v6, s[{sDR}:{sDR+3}], s30 offen', f'buffer_load_dword v{PFD}, v6, s[{sDI}:{sDI+3}], s30 offen')
    for r in range(4): a(f'v_mov_b32 v{T0+r}, -1')
    a('s_lshl_b32 s30, s2, 15')
    for k in range(8): a(f'buffer_store_dwordx4 {R(T0)}, v5, s[{sXC}:{sXC+3}], s30 offen', 's_add_u32 s30, s30, 4096')
    npf = (0 if cfg.get('no_prefetch') else cfg.get('code_kb', 24)//4 + 4 + 7 + 7 + 2) + 8
    a(f's_waitcnt vmcnt({min(63,npf)})')
    a('s_branch K1_fft')
    a('K1_fft_wait_loader:')
    a('s_waitcnt vmcnt(22)')
    a('K1_fft:')
    a('s_barrier')
    stamp(a, cfg, 1)
    XF, D1, VP, D2 = 72, 88, 120, 136
    GX = 168
    for rr in range(2):
        for tau in range(2):
            b = vAT0 if tau == 0 else vAT1
            r = XF + 8*rr + 4*tau
            a(f'ds_read_b64_tr_b16 {R(r,2)}, v{b} offset:{rr*2048}', f'ds_read_b64_tr_b16 {R(r+2,2)}, v{b} offset:{rr*2048+256}')
    a(f'ds_read_b128 {R(GX)}, v{vGA}', f'ds_read_b128 {R(GX+4)}, v{vGA} offset:16')
    a('s_waitcnt lgkmcnt(0)')
    for rr in range(2):
        for tau in range(2):
            for part in range(2):
                a(mfma(D1 + 16*rr + 8*tau + 4*part, XF + 8*rr + 4*tau, CAr if part == 0 else CAi, '0'))
    a(f'v_mov_b32 v5, 0')
    for k in range(8): a(f'v_dot2_f32_bf16 v5, v{GX+k}, v{GWR+k}, v5')
    for rr in range(2):
        for tau in range(2):
            for r in range(4):
                vr = D1 + 16*rr + 8*tau + r; vi = vr + 4; c = TWc + 4*tau + r; s = TWs + 4*tau + r
                a(f'v_mul_f32 v6, v{vr}, v{c}', f'v_mul_f32 v7, v{vi}, v{c}', f'v_fma_f32 v{vi}, v{vi}, v{s}, v6', f'v_fma_f32 v{vr}, -v{vr}, v{s}, v7')
        for tau in range(2):
            re = D1 + 16*rr + 8*tau + 4; im = re - 4
            a(f'v_cvt_pk_bf16_f32 v{VP+8*rr+2*tau}, v{re}, v{re+1}', f'v_cvt_pk_bf16_f32 v{VP+8*rr+2*tau+1}, v{re+2}, v{re+3}')
            a(f'v_cvt_pk_bf16_f32 v{VP+8*rr+4+2*tau}, v{im}, v{im+1}', f'v_cvt_pk_bf16_f32 v{VP+8*rr+4+2*tau+1}, v{im+2}, v{im+3}')
    a('s_nop 1')
    for rr in range(2):
        vr, vi = VP + 8*rr, VP + 8*rr + 4
        for sg in range(2):
            a(mfma(D2 + 16*rr + 8*sg, vr, CBC + 4*sg, '0'), mfma(D2 + 16*rr + 8*sg + 4, vi, CBC + 4*sg, '0'))
        for sg in range(2):
            a(mfma(D2 + 16*rr + 8*sg, vi, CBS + 4*sg, D2 + 16*rr + 8*sg), mfma(D2 + 16*rr + 8*sg + 4, vr, CBN + 4*sg, D2 + 16*rr + 8*sg + 4))
    a('v_add_f32 v5, v5, v5 row_ror:8 row_mask:0xf bank_mask:0xf', 's_nop 1', 'v_add_f32 v5, v5, v5 row_ror:4 row_mask:0xf bank_mask:0xf', 's_nop 1',
      'v_add_f32 v5, v5, v5 row_ror:2 row_mask:0xf bank_mask:0xf', 's_nop 1', 'v_add_f32 v5, v5, v5 row_ror:1 row_mask:0xf bank_mask:0xf', 's_nop 1')
    a('v_readlane_b32 s30, v5, 0', 'v_readlane_b32 s31, v5, 16', 'v_readlane_b32 s32, v5, 32', 'v_readlane_b32 s33, v5, 48', 's_nop 1')
    a('v_mov_b32 v5, s30', 'v_add_f32 v5, s31, v5', 'v_add_f32 v5, s32, v5', 'v_add_f32 v5, s33, v5')
    a('v_mul_f32 v5, 0xbfb8aa3b, v5', 'v_exp_f32 v5, v5', 's_nop 0', 'v_add_f32 v5, 1.0, v5', 'v_rcp_f32 v5, v5')
    a(f's_lshl_b32 s30, s{sW}, 1', f's_add_u32 s30, s30, s{sHH}', 's_lshl_b32 s30, s30, 3', f's_lshr_b32 s31, s{sS1}, 4', 's_add_u32 s30, s30, s31',
      f's_and_b32 s31, s{sS1}, 15', 's_lshl_b32 s31, s31, 7', 's_add_u32 s30, s30, s31', 's_lshl_b32 s30, s30, 2', 'v_mov_b32 v6, 0')
    a('s_mov_b64 s[32:33], exec', 's_mov_b64 exec, 1', f'buffer_store_dword v5, v6, s[{sG}:{sG+3}], s30 offen', 's_mov_b64 exec, s[32:33]')
    for rr in range(2):
        for sg in range(2):
            for part in range(2):
                d = D2 + 16*rr + 8*sg + 4*part
                t = VP + 2*((rr*4 + sg*2 + part) % 8)
                a(f'v_cvt_pk_bf16_f32 v{t}, v{d}, v{d+1}', f'v_cvt_pk_bf16_f32 v{t+1}, v{d+2}, v{d+3}')
                a(f'ds_write_b64 v{vZW+rr}, {R(t,2)} offset:{part*1024 + sg*512}')
    a('s_waitcnt lgkmcnt(0)', 's_barrier')
    ZF, DG = 72, 88
    for j in range(4):
        if j: a(f'v_xor_b32 v{5+j}, {32*j}, v{vZR}')
    for j in range(4):
        b = vZR if j == 0 else 5 + j
        a(f'ds_read_b64_tr_b16 {R(ZF+4*j,2)}, v{b}', f'ds_read_b64_tr_b16 {R(ZF+4*j+2,2)}, v{b} offset:8192')
    a('v_lshlrev_b32 v9, 19, v3', 'v_and_b32 v10, 1, v4', 'v_lshlrev_b32 v10, 5, v10', 'v_add_u32 v9, v9, v10', 'v_lshrrev_b32 v10, 1, v4', 'v_lshlrev_b32 v10, 4, v10', 'v_add_u32 v9, v9, v10')
    a(f's_lshl_b32 s30, s{sS1}, 11', f's_lshl_b32 s31, s{sHH}, 10', 's_add_u32 s30, s30, s31', f's_lshl_b32 s31, s{sW}, 7', 's_add_u32 s30, s30, s31', 's_add_u32 s31, s30, 262144')
    a('s_waitcnt lgkmcnt(0)')
    for j in range(4):
        a(mfma(DG + 8*j, ZF + 4*j, CGr, '0'), mfma(DG + 8*j + 4, ZF + 4*j, CGn, '0'))
    a('s_barrier')
    a('s_nop 3')
    PK = 120
    for part in range(2):
        for pr in range(2):
            r = PK + 8*part + 4*pr
            d0 = DG + 8*(2*pr) + 4*part; d1 = DG + 8*(2*pr+1) + 4*part
            a(f'v_cvt_pk_bf16_f32 v{r}, v{d0}, v{d0+1}', f'v_cvt_pk_bf16_f32 v{r+1}, v{d0+2}, v{d0+3}',
              f'v_cvt_pk_bf16_f32 v{r+2}, v{d1}, v{d1+1}', f'v_cvt_pk_bf16_f32 v{r+3}, v{d1+2}, v{d1+3}')
    a('s_nop 1')
    for part in range(2):
        for pr in range(2):
            r = PK + 8*part + 4*pr
            a(f'v_permlane16_swap_b32 v{r}, v{r+2}', f'v_permlane16_swap_b32 v{r+1}, v{r+3}')
    a('s_nop 1')
    for part in range(2):
        for pr in range(2):
            r = PK + 8*part + 4*pr
            a(f'buffer_store_dwordx4 {R(r)}, v9, s[{sU}:{sU+3}], s{30+part} offen offset:{64*pr}')
    stamp(a, cfg, 2)
    a(f's_cmp_ge_u32 s{sW}, 4', 's_cbranch_scc1 K1_loader')
    ACC = 128
    P = dict(X=16, W=32); Q = dict(X=60, W=76)
    bX0, bX1, bWE, bWO = 115, 116, 117, 118
    cX0, cX1, cWE, cWO = 119, 120, 121, 122
    a(f's_lshr_b32 s{sWM}, s{sW}, 1', f's_and_b32 s{sWN}, s{sW}, 1')
    a('v_lshrrev_b32 v5, 1, v3', 'v_xor_b32 v5, v5, v4', 'v_lshlrev_b32 v5, 4, v5', 'v_lshlrev_b32 v6, 7, v3', 'v_add_u32 v5, v5, v6')
    a(f's_lshl_b32 s34, s{sWM}, 13', f'v_add_u32 v{bX0}, s34, v5', f'v_xor_b32 v{bX1}, 64, v{bX0}')
    a('v_lshlrev_b32 v5, 3, v4', 'v_lshrrev_b32 v6, 2, v3', 'v_add_u32 v5, v5, v6', 'v_mul_u32_u24 v5, 448, v5', 'v_and_b32 v6, 3, v3', 'v_lshlrev_b32 v6, 3, v6', 'v_add_u32 v5, v5, v6')
    a('v_and_b32 v6, 1, v4', 'v_lshlrev_b32 v6, 5, v6', f's_mul_i32 s35, s{sWN}, 224', f's_add_u32 s35, s35, {A_BYTES}', 'v_add_u32 v5, s35, v5')
    a('v_add_u32 v7, v5, v6', 'v_sub_u32 v8, v5, v6', f's_cmp_eq_u32 s{sWN}, 0', 's_cselect_b64 vcc, -1, 0', 's_nop 1')
    a(f'v_cndmask_b32 v{bWE}, v8, v7, vcc', f'v_cndmask_b32 v{bWO}, v7, v8, vcc')
    a(f'v_mov_b32 v{cX0}, v{bX0}', f'v_mov_b32 v{cX1}, v{bX1}', f'v_mov_b32 v{cWE}, v{bWE}', f'v_mov_b32 v{cWO}, v{bWO}')
    def reads(S, ks, xb, we, wo):
        L = []
        for (t, i) in [('X',0),('W',0),('X',1),('W',1),('X',2),('W',2),('X',3),('W',3),('W',4),('W',5),('W',6)]:
            if t == 'X':
                L.append(f'ds_read_b128 {R(S["X"]+4*i)}, v{xb} offset:{i*2048}')
            else:
                r = S['W'] + 4*i; b = we if i % 2 == 0 else wo; off = i*32 + ks*32*448
                L.append(f'ds_read_b64_tr_b16 {R(r,2)}, v{b} offset:{off}'); L.append(f'ds_read_b64_tr_b16 {R(r+2,2)}, v{b} offset:{off+4*448}')
        return L
    def mfmas(S):
        return [mfma(ACC + 4*(j*4+i), S['W']+4*j, S['X']+4*i, ACC + 4*(j*4+i)) for j in range(7) for i in range(4)]
    sRS, sCI = 53, 54
    a(f's_mov_b32 s{sRS}, 0', f's_mov_b32 s{sCI}, 0')
    a('s_barrier')
    for ins in reads(P, 0, cX0, cWE, cWO): a(ins)
    for r in range(ACC, ACC+112): a(f'v_mov_b32 v{r}, 0')
    a('s_waitcnt lgkmcnt(0)')
    stamp(a, cfg, 3)
    a('.p2align 6', 'K1_loop:')
    adv = [f's_add_u32 s{sRS}, s{sRS}, {STAGE}', f's_cmp_eq_u32 s{sRS}, {STAGE*NS}', f's_cselect_b32 s{sRS}, 0, s{sRS}', f'v_add_u32 v{cX0}, s{sRS}, v{bX0}']
    a(*interleave(mfmas(P), reads(Q, 1, cX1, cWE, cWO) + adv))
    a('s_waitcnt lgkmcnt(0)', 's_barrier')
    M = mfmas(Q)
    a(M[0], f'v_add_u32 v{cWE}, s{sRS}, v{bWE}', f'v_add_u32 v{cWO}, s{sRS}, v{bWO}')
    oth = reads(P, 0, cX0, cWE, cWO) + [f'v_add_u32 v{cX1}, s{sRS}, v{bX1}', f's_add_u32 s{sCI}, s{sCI}, 1', f's_cmp_lt_u32 s{sCI}, 16']
    a(*interleave(M[1:], oth))
    a('s_waitcnt lgkmcnt(0)', 's_cbranch_scc1 K1_loop')
    stamp(a, cfg, 4)
    a('s_mov_b32 s33, 7168', f's_lshl_b32 s30, s{sMT}, 7', f's_lshl_b32 s31, s{sWM}, 6', 's_add_u32 s30, s30, s31',
      'v_add_u32 v5, s30, v3', 'v_mul_lo_u32 v5, v5, s33', f's_mul_i32 s30, s{sNT}, 448', f's_mul_i32 s31, s{sWN}, 224', 's_add_u32 s30, s30, s31', 'v_add_u32 v5, s30, v5')
    a('v_and_b32 v6, 1, v4', 'v_lshlrev_b32 v6, 5, v6', 'v_lshrrev_b32 v7, 1, v4', 'v_lshlrev_b32 v7, 4, v7', 'v_add_u32 v6, v6, v7', 'v_add_u32 v9, v5, v6',
      'v_lshlrev_b32 v6, 3, v4', 'v_add_u32 v10, v5, v6')
    st_flags = cfg.get('h_store', '')
    for i in range(4):
        a(f's_mov_b32 s34, {i*16*7168}')
        base = 16 + i*16
        for j in range(7):
            acc = ACC + 4*(j*4+i); r = base + 2*j
            a(f'v_cvt_pk_bf16_f32 v{r}, v{acc}, v{acc+1}', f'v_cvt_pk_bf16_f32 v{r+1}, v{acc+2}, v{acc+3}')
            a(f'v_pk_max_i16 v{r}, v{r}, 0', f'v_pk_max_i16 v{r+1}, v{r+1}, 0')
        a('s_nop 1')
        for p in range(3):
            r = base + 4*p
            a(f'v_permlane16_swap_b32 v{r}, v{r+2}', f'v_permlane16_swap_b32 v{r+1}, v{r+3}')
        a('s_nop 1')
        for p in range(3):
            r = base + 4*p
            a(f'buffer_store_dwordx4 {R(r)}, v9, s[{sH}:{sH+3}], s34 offen offset:{64*p} {st_flags}')
        a(f'buffer_store_dwordx2 {R(base+12,2)}, v10, s[{sH}:{sH+3}], s34 offen offset:192 {st_flags}')
    if cfg.get('stamps'):
        a('s_waitcnt vmcnt(0)'); stamp(a, cfg, 5)
        a(f's_cmp_eq_u32 s{sW}, 0', 's_cbranch_scc0 K1_end'); stamp_flush(a, cfg, 6, 0, 16)
    a('s_endpgm')
    a('K1_loader:')
    a('s_waitcnt vmcnt(16)', 's_barrier')
    dma_block()
    a(f's_mov_b32 s{sIT}, 0')
    a('K1_lloop:')
    a('s_waitcnt vmcnt(11)', 's_barrier')
    a(f's_add_u32 s{sIT}, s{sIT}, 1', f's_cmp_ge_u32 s{sIT}, {16-NS+1}', 's_cbranch_scc1 K1_lskip')
    dma_block()
    a('s_branch K1_lnext', 'K1_lskip:', 's_waitcnt vmcnt(0)', 'K1_lnext:')
    a(f's_cmp_lt_u32 s{sIT}, 16', 's_cbranch_scc1 K1_lloop')
    a('K1_end:', 's_endpgm')

def desc(a, name, vgpr, sgpr=102):
    a('.section .rodata,"a"', '.p2align 6', f'.amdhsa_kernel {name}', f'  .amdhsa_next_free_vgpr {vgpr}', f'  .amdhsa_next_free_sgpr {sgpr}',
      f'  .amdhsa_accum_offset {(vgpr+3)//4*4}', '  .amdhsa_group_segment_fixed_size 0', '  .amdhsa_kernarg_size 96', '  .amdhsa_user_sgpr_count 2',
      '  .amdhsa_user_sgpr_kernarg_segment_ptr 1', '  .amdhsa_system_sgpr_workgroup_id_x 1', '.end_amdhsa_kernel')

HEADER = open('gated_mix__spectral_fnet__dense_activation_relu__prompt.s.ref').read().split('; Override launch geometry')[0]

def generate(cfg):
    from gen_k2 import gen_k2, K2_LDS
    a = Asm()
    a(HEADER.rstrip())
    a(f'; @launch kernel={K1} grid=(256,1,1) block=(512,1,1) lds={3*45056}')
    if not cfg.get('k1_only'):
        a(f'; @launch kernel={K2} grid=(256,1,1) block=(512,1,1) lds={K2_LDS}')
    a('.amdgcn_target "amdgcn-amd-amdhsa--gfx950"', '.text')
    gen_k1(a, cfg)
    gen_k2(a, cfg)
    a('K_code_end:', '.fill 64, 4, 0xbf800000')
    desc(a, K1, 244)
    desc(a, K2, 244)
    return a.text()

def main():
    out = sys.argv[1] if len(sys.argv) > 1 else 'gated_mix__spectral_fnet__dense_activation_relu__prompt.s'
    cfg = {}
    for kv in sys.argv[2:]:
        k, v = kv.split('=', 1)
        cfg[k] = int(v) if v.lstrip('-').isdigit() else v
    open(out, 'w').write(generate(cfg))

if __name__ == '__main__':
    main()
```
